```python
import torch

def _softmax(x, axis=-1):
    return torch.softmax(x, dim=axis)
def _gelu(x):
    return torch.nn.functional.gelu(x, approximate="tanh")
def _silu(x):
    return torch.nn.functional.silu(x)
def _sigmoid(x):
    return torch.sigmoid(x)
def _layernorm(x, axis=-1, eps=1e-5):
    m = x.mean(dim=axis, keepdim=True)
    v = x.var(dim=axis, keepdim=True, unbiased=False)
    return (x - m) / torch.sqrt(v + eps)
def _scatter_add(tgt, idx, src, axis=0):
    return tgt.clone().index_add_(axis, idx, src)
def _segment_sum(src, seg, n):
    out = torch.zeros((n,) + src.shape[1:], dtype=src.dtype)
    return out.index_add_(0, seg, src)
def _pad(x, pw):
    flat = tuple(v for pair in reversed(pw) for v in pair)
    return torch.nn.functional.pad(x, flat)

kernel_name = 'parallel_sum__mha_block__moe_arch_mod__prompt'

def setup_inputs():

    _w = (lambda a: (lambda t: t.to(torch.bfloat16) if t.is_floating_point() else t)(torch.as_tensor(a)))
    def _A_setup():
        B, S, D, H = 1, 2048, 1024, 32
        return {
            "x": _w((lambda *s: torch.randn(*s, dtype=torch.bfloat16) * 0.05)(B, S, D)),
            "wqkv": _w((lambda *s: torch.randn(*s, dtype=torch.bfloat16) * 0.05)(D, 3 * D)),
            "wo": _w((lambda *s: torch.randn(*s, dtype=torch.bfloat16) * 0.05)(D, D)),
        }
    _A_in = _A_setup()

    def _B_setup():
        B, S, D, F, C = 1, 2048, 1024, 3584, 1
        return {
            "x": _w((lambda *s: torch.randn(*s, dtype=torch.bfloat16) * 0.05)(B, S, D)),
            "w_r": _w((lambda *s: torch.randn(*s, dtype=torch.bfloat16) * 0.05)(D)),
            "w_gate": _w((lambda *s: torch.randn(*s, dtype=torch.bfloat16) * 0.05)(D, F)),
            "w_up": _w((lambda *s: torch.randn(*s, dtype=torch.bfloat16) * 0.05)(D, F)),
            "w_down": _w((lambda *s: torch.randn(*s, dtype=torch.bfloat16) * 0.05)(F, D)),
        }
    _B_in = _B_setup()

    return {
        "A_x": _A_in["x"],
        "A_wqkv": _A_in["wqkv"],
        "A_wo": _A_in["wo"],
        "B_x": _B_in["x"],
        "B_w_r": _B_in["w_r"],
        "B_w_gate": _B_in["w_gate"],
        "B_w_up": _B_in["w_up"],
        "B_w_down": _B_in["w_down"],
    }

def reference(A_x, A_wqkv, A_wo, B_x, B_w_r, B_w_gate, B_w_up, B_w_down):
    def _A_ref(x, wqkv, wo):
        B, S, D = x.shape
        H = 32
        Dh = D // H
        qkv = (lambda x, *d: x.permute(*d))((x @ wqkv).reshape(B, S, 3, H, Dh), 2, 0, 3, 1, 4)
        q, k, v = qkv[0], qkv[1], qkv[2]
        scores = torch.einsum("bhqd,bhkd->bhqk", q, k) * (Dh ** -0.5)
        p = _softmax(scores, axis=-1)
        o = torch.einsum("bhqk,bhkd->bhqd", p, v)
        return (lambda x, *d: x.permute(*d))(o, 0, 2, 1, 3).reshape(B, S, D) @ wo

    def _B_ref(x, w_r, w_gate, w_up, w_down):
        B, S, D = x.shape
        C = 1
        r = x @ w_r
        idx = torch.argsort(-r, axis=-1)[:, :C]
        idx_e = (lambda x, n, axis: torch.repeat_interleave(x, n, dim=axis))(idx.reshape(B, C, 1), D, axis=2)
        x_sel = (lambda x, i, axis: torch.take_along_dim(x, i, dim=axis))(x, idx_e, axis=1)
        g = _silu(x_sel @ w_gate)
        u = x_sel @ w_up
        y = (g * u) @ w_down
        r_sel = _sigmoid((lambda x, i, axis: torch.take_along_dim(x, i, dim=axis))(r, idx, axis=1))
        y = y * r_sel.reshape(B, C, 1)
        b_off = (torch.arange(B) * S).reshape(B, 1)
        flat_idx = (idx + b_off).reshape(B * C)
        zero = (x * 0.0).reshape(B * S, D)
        upd = _scatter_add(zero, flat_idx, y.reshape(B * C, D), axis=0)
        return x + upd.reshape(B, S, D)

    x = A_x
    xn = _layernorm(x, axis=-1)
    return x + _A_ref(xn, A_wqkv, A_wo) + _B_ref(xn, B_w_r, B_w_gate, B_w_up, B_w_down)
```

```python
import re

class Asm:
    def __init__(self):
        self.lines = []
    def __call__(self, s=""):
        for l in s.split("\n"):
            self.lines.append(l if (l.endswith(":") or l.startswith(".") or l.startswith(";")) else "    " + l.strip())
    def label(self, n): self.lines.append(n + ":")
    def c(self, s): self.lines.append("    ; " + s)
    def text(self): return "\n".join(self.lines) + "\n"

class Regs:
    def __init__(self, prefix, start, limit):
        self.p, self.next, self.limit, self.hi = prefix, start, limit, start
    def alloc(self, n=1, align=None):
        align = align or (1 if n == 1 else 2)
        a = (self.next + align - 1) // align * align
        self.next = a + n
        assert self.next <= self.limit, f"out of {self.p} regs"
        self.hi = max(self.hi, self.next)
        return a
    def mark(self): return self.next
    def release(self, m): self.next = m

def v(a, n=1): return f"v{a}" if n == 1 else f"v[{a}:{a+n-1}]"
def s(a, n=1): return f"s{a}" if n == 1 else f"s[{a}:{a+n-1}]"

_reg = re.compile(r"^(-|abs\()?([vsa])(\d+)\)?$|^(-)?([vsa])\[(\d+):(\d+)\]$")
def parse_op(op):
    op = op.strip()
    if op in ("vcc", "vcc_lo", "vcc_hi"): return {"vcc"}
    if op in ("exec", "exec_lo", "exec_hi"): return {"exec"}
    if op == "m0": return {"m0"}
    op2 = op.replace("|", "")
    m = _reg.match(op2)
    if not m: return set()
    if m.group(2): return {m.group(2) + m.group(3)}
    return {m.group(5) + str(i) for i in range(int(m.group(6)), int(m.group(7)) + 1)}

TRANS = ("v_exp_", "v_log_", "v_rcp_", "v_rsq_", "v_sqrt_", "v_sin_", "v_cos_")
class I:
    def __init__(self, text, idx):
        self.text, self.idx = text, idx
        t = text.split(";")[0].strip()
        parts = t.split(None, 1)
        self.mn = parts[0]
        rest = parts[1] if len(parts) > 1 else ""
        ops, depth, cur = [], 0, ""
        for ch in rest:
            if ch == "[": depth += 1
            if ch == "]": depth -= 1
            if ch == "," and depth == 0: ops.append(cur); cur = ""
            else: cur += ch
        if cur.strip(): ops.append(cur)
        self.mods = ""
        if ops:
            l = ops[-1].strip().split(None, 1)
            ops[-1] = l[0]
            self.mods = l[1] if len(l) > 1 else ""
        self.ops = [o.strip() for o in ops]
        mn = self.mn
        R = [parse_op(o) for o in self.ops]
        self.defs, self.uses = set(), set()
        self.kind = "other"
        self.srcC = set(); self.srcAB = set(); self.passes = 0
        self.target = None
        self.ws = 1
        if mn.startswith("v_mfma"):
            self.kind = "mfma"; self.defs = R[0]; self.srcAB = R[1] | R[2]; self.srcC = R[3]; self.uses = self.srcAB | self.srcC
            self.passes = 8 if "32x32" in mn else (4 if "16x16" in mn else 2)
        elif mn.startswith("v_"):
            self.kind = "valu"
            if mn.startswith("v_cmp"):
                self.defs = R[0]; self.uses = set().union(*R[1:])
                if mn.startswith("v_cmpx"): self.defs |= {"exec"}
            elif mn.startswith(("v_add_co", "v_sub_co", "v_addc_co", "v_subb_co", "v_div_scale", "v_mad_u64")):
                self.defs = R[0] | R[1]; self.uses = set().union(*R[2:])
            elif mn.startswith("v_permlane") and "swap" in mn:
                self.defs = R[0] | R[1]; self.uses = R[0] | R[1]
            elif mn == "v_nop": pass
            else:
                self.defs = R[0]; self.uses = set().union(*R[1:]) if len(R) > 1 else set()
                if mn.startswith(("v_fmac", "v_dot2c", "v_writelane", "v_pk_fmac")) or "UNUSED_PRESERVE" in self.mods or "dpp" in mn: self.uses |= R[0]
                if mn.startswith("v_cndmask") and len(R) == 3: self.uses |= {"vcc"}
                if mn.startswith("v_div_fmas"): self.uses |= {"vcc"}
        elif mn.startswith(("buffer_", "global_", "flat_")):
            self.kind = "vmem"
            lds = ("lds" in self.mods.split()) or "_lds_" in mn
            self.lds = lds
            if mn in ("buffer_wbl2", "buffer_inv"): pass
            elif "load" in mn and not lds: self.defs = R[0]; self.uses = set().union(*R[1:])
            elif "atomic" in mn and "sc0" in self.mods.split() and mn.startswith("global"): self.defs = R[0]; self.uses = set().union(*R[1:])
            elif "atomic" in mn and "sc0" in self.mods.split(): self.defs = R[0]; self.uses = set().union(*R)
            else: self.uses = set().union(*R) if R else set()
            if lds: self.uses |= {"m0"}
            self.wide_store = ("store" in mn and ("x4" in mn or "x3" in mn))
            if self.wide_store: self.sdata = R[0] if mn.startswith("buffer") else R[1]
        elif mn.startswith("ds_"):
            self.kind = "ds"
            if "read" in mn or "permute" in mn or "swizzle" in mn or "rtn" in mn: self.defs = R[0]; self.uses = set().union(*R[1:]) if len(R) > 1 else set()
            else: self.uses = set().union(*R)
        elif mn.startswith("s_"):
            self.kind = "salu"
            if mn == "s_nop": self.ws = int(self.ops[0], 0) + 1
            elif mn.startswith(("s_cbranch", "s_branch")): self.target = self.ops[0]
            elif mn.startswith(("s_cmp", "s_bitcmp", "s_waitcnt", "s_barrier", "s_endpgm", "s_sleep", "s_setprio")): self.uses = set().union(*R) if R else set()
            else:
                self.defs = R[0] if R else set(); self.uses = set().union(*R[1:]) if len(R) > 1 else set()
                if "saveexec" in mn: self.defs |= {"exec"}
        self.trans = mn.startswith(TRANS)
        self.dpp = ("dpp" in mn) or any(k in self.mods for k in ("quad_perm", "row_shr", "row_shl", "row_ror", "row_bcast", "row_mirror", "row_half_mirror", "row_newbcast", "wave_"))
        self.sdwa_out = ("dst_sel:WORD" in self.mods or "dst_sel:BYTE" in self.mods)

def need(p, c):
    n = 0
    vdefs = {r for r in p.defs if r[0] in "va" and r != "vcc"}
    sdefs = {r for r in p.defs if r[0] == "s" or r == "vcc"}
    if p.kind == "valu":
        if c.kind == "mfma" and vdefs & c.uses: n = max(n, 2)
        if c.kind == "valu":
            if p.trans and not c.trans and vdefs & (c.uses): n = max(n, 1)
            if p.sdwa_out and vdefs & (c.uses | c.defs): n = max(n, 1)
            if c.mn.startswith(("v_readlane", "v_readfirstlane")) and vdefs & c.uses: n = max(n, 1)
            if c.dpp and vdefs & c.uses: n = max(n, 2)
            if c.mn.startswith("v_permlane") and vdefs & c.uses: n = max(n, 2)
            if sdefs & c.uses:
                n = max(n, 4 if c.mn.startswith(("v_readlane", "v_writelane", "v_div_fmas")) else 2)
            if "exec" in p.defs:
                if c.dpp: n = max(n, 5)
                if c.mn.startswith(("v_readlane", "v_readfirstlane", "v_writelane", "v_permlane")): n = max(n, 4)
        if c.kind == "vmem" and sdefs & c.uses: n = max(n, 5)
        if c.kind == "mfma" and "exec" in p.defs: n = max(n, 4)
        if c.kind == "salu" and sdefs & c.uses: n = max(n, 1)
    if p.kind == "mfma":
        P = p.passes
        if c.kind == "mfma":
            if p.defs & c.srcAB: n = max(n, {2: 5, 4: 8, 8: 12}[P])
            if p.defs & c.srcC:
                if p.defs == c.srcC and P == c.passes: n = max(n, 2 if P == 2 else 0)
                else: n = max(n, {2: 4, 4: 6, 8: 10}[P])
            elif p.defs & c.defs: n = max(n, {2: 4, 4: 6, 8: 10}[P])
        elif c.kind in ("valu", "vmem", "ds"):
            if p.defs & (c.uses | c.defs): n = max(n, {2: 5, 4: 8, 8: 12}[P])
            if c.kind == "valu" and p.srcC & c.defs: n = max(n, {2: 1, 4: 3, 8: 7}[P])
    if p.kind == "salu" and "m0" in p.defs and c.kind == "vmem" and getattr(c, "lds", False): n = max(n, 1)
    if p.kind == "vmem" and getattr(p, "wide_store", False) and p.sdata & c.defs:
        n = max(n, 2 if c.kind in ("valu", "mfma") else 1)
    return n

def check(text):
    ins, labels = [], {}
    for ln in text.split("\n"):
        t = ln.split(";")[0].strip()
        if not t: continue
        if t.endswith(":"): labels[t[:-1]] = len(ins); continue
        if t.startswith("."): continue
        ins.append(I(t, len(ins)))
    def succ(i):
        x = ins[i]
        if x.mn == "s_endpgm": return []
        out = []
        if x.target is not None and x.target in labels: out.append(labels[x.target])
        if x.mn != "s_branch" and i + 1 < len(ins): out.append(i + 1)
        return out
    bad = set()
    for p in ins:
        if p.kind not in ("valu", "mfma", "vmem") and "m0" not in p.defs: continue
        stack = [(j, 0) for j in succ(p.idx)]
        seen = {}
        while stack:
            j, d = stack.pop()
            if j >= len(ins) or d >= 13 or seen.get(j, 99) <= d: continue
            seen[j] = d
            c = ins[j]
            n = need(p, c)
            if n > d: bad.add((p.idx, j, n, d))
            for k in succ(j): stack.append((k, d + c.ws))
    msgs = [f"HAZARD need {n} have {d}:\n    {ins[a].text}\n    {ins[b].text}" for a, b, n, d in sorted(bad)]
    return msgs
```

```python
from asmlib import *
WS_STATS = 0x0
WS_R     = 0x4000
WS_CS    = 0x8000
WS_GU    = 0x40000
WS_Y     = 0x140000
WS_Q     = 0x300000
WS_KV    = 0x700000
WS_O     = 0xF00000
WS_TIME  = 0x1400000
WS_SIZE  = 0x10000000
KA = dict(x=0, wqkv=8, wo=16, bx=24, wr=32, wg=40, wu=48, wd=56, out=64, dbg=72, ws=80)

def srd(a, d, base, nbytes):
    a(f"s_mov_b32 s{d}, s{base}")
    a(f"s_and_b32 s{d+1}, s{base+1}, 0xffff")
    a(f"s_mov_b32 s{d+2}, {nbytes:#x}")
    a(f"s_mov_b32 s{d+3}, 0x00020000")

def kernel_begin(a, name):
    a(f".globl {name}")
    a(".p2align 8")
    a(f".type {name},@function")
    a.label(name)

def kernel_desc(name, nv, ns=102):
    acc = (nv + 3) // 4 * 4
    return f""".amdhsa_kernel {name}
  .amdhsa_next_free_vgpr {nv}
  .amdhsa_next_free_sgpr {ns}
  .amdhsa_accum_offset {acc}
  .amdhsa_group_segment_fixed_size 0
  .amdhsa_kernarg_size 88
  .amdhsa_user_sgpr_count 2
  .amdhsa_user_sgpr_kernarg_segment_ptr 1
  .amdhsa_system_sgpr_workgroup_id_x 1
  .amdhsa_float_denorm_mode_32 3
.end_amdhsa_kernel
"""

def wg_map(a, s_head, s_qb, s_tmp):
    a(f"s_lshr_b32 s{s_tmp}, s2, 3")
    a(f"s_and_b32 s{s_head}, s{s_tmp}, 7")
    a(f"s_lshr_b32 s{s_qb}, s{s_tmp}, 3")
    a(f"s_and_b32 s{s_tmp}, s2, 6")
    a(f"s_lshl_b32 s{s_tmp}, s{s_tmp}, 2")
    a(f"s_add_u32 s{s_head}, s{s_head}, s{s_tmp}")
    a(f"s_and_b32 s{s_tmp}, s2, 1")
    a(f"s_lshl_b32 s{s_tmp}, s{s_tmp}, 2")
    a(f"s_add_u32 s{s_qb}, s{s_qb}, s{s_tmp}")

def finish(header, body, descs):
    txt = header + '.amdgcn_target "amdgcn-amd-amdhsa--gfx950"\n.text\n' + body + '.section .rodata,"a"\n' + "".join(".p2align 6\n" + d for d in descs)
    msgs = check(body)
    for m in msgs: print(m)
    assert not msgs, "hazards"
    return txt
```

```python
from pieces import *
LDS_B = 98304; LDS_EP = 135168; LDS_A_TOTAL = LDS_EP + 2560

def m1_issue(a, V, sG, sU, s_job, st, vlane):
    W = V.alloc(64, 4); off = V.alloc(); t = V.alloc()
    a(f"s_mul_i32 s{st}, s{s_job}, 2341"); a(f"s_lshr_b32 s{st}, s{st}, 16")
    a(f"s_mul_i32 s{st+1}, s{st}, 28"); a(f"s_sub_u32 s{st+1}, s{s_job}, s{st+1}")
    a(f"v_lshrrev_b32 v{off}, 4, v{vlane}"); a(f"v_mul_u32_u24 v{off}, {8*7168}, v{off}")
    a(f"v_and_b32 v{t}, 15, v{vlane}"); a(f"v_lshl_add_u32 v{off}, v{t}, 4, v{off}")
    a(f"s_mul_i32 s{st+2}, s{st}, {32*7168}"); a(f"s_lshl_b32 s{st+3}, s{st+1}, 8"); a(f"s_add_u32 s{st+2}, s{st+2}, s{st+3}")
    for i in range(8):
        a(f"buffer_load_dwordx4 {v(W+8*i,4)}, v{off}, {s(sG,4)}, s{st+2} offen nt")
        a(f"buffer_load_dwordx4 {v(W+8*i+4,4)}, v{off}, {s(sU,4)}, s{st+2} offen nt")
        if i < 7: a(f"s_add_u32 s{st+2}, s{st+2}, 7168")
    return W

def m1_xload(a, V, sX, sWS, s_key, st, vlane, flags=""):
    X = V.alloc(4, 4); S = V.alloc(2, 2); off = V.alloc(); z = V.alloc()
    a(f"s_and_b32 s{st+2}, s{s_key}, 0xffff"); a(f"s_sub_u32 s{st+2}, 2047, s{st+2}")
    a(f"s_lshl_b32 s{st+3}, s{st+2}, 3")
    a(f"s_lshl_b32 s{st+2}, s{st+2}, 11"); a(f"s_lshl_b32 s{st+4}, s{st}, 6"); a(f"s_add_u32 s{st+2}, s{st+2}, s{st+4}")
    a(f"v_and_b32 v{off}, 48, v{vlane}"); a(f"v_mov_b32 v{z}, 0")
    a(f"buffer_load_dwordx4 {v(X,4)}, v{off}, {s(sX,4)}, s{st+2} offen")
    a(f"buffer_load_dwordx2 {v(S,2)}, v{z}, {s(sWS,4)}, s{st+3} offen {flags}")
    return X, S

def m1_compute(a, V, W, X, S, MK, sWS, st, smask, vlane, flags=""):
    mk = V.mark()
    XS = V.alloc(8); A = [V.alloc(4, 4) for _ in range(2)]; D = [V.alloc(4, 4) for _ in range(2)]; t = V.alloc(); off = V.alloc()
    unpack(a, XS, X, 4, smask)
    normalize(a, XS, 8, f"v{S}", f"v{S+1}", t, smask)
    for i in range(8):
        a(f"v_lshrrev_b32 v{t}, 16, v{XS+i}"); a(f"v_or_b32 v{t}, v{t}, v{XS+i}")
        for k in range(4): a(f"v_and_b32 v{A[i%2]+k}, v{t}, v{MK+k}")
        a("s_nop 1")
        for q in range(2): a(f"{M16} {v(D[q],4)}, {v(A[i%2],4)}, {v(W+8*i+4*q,4)}, {'0' if i == 0 else v(D[q],4)}")
    a(f"v_and_b32 v{off}, 15, v{vlane}"); a(f"v_lshlrev_b32 v{off}, 5, v{off}")
    a(f"v_and_b32 v{t}, 16, v{vlane}"); a(f"v_add_u32 v{off}, v{off}, v{t}")
    a(f"s_mul_i32 s{st+2}, s{st}, {2*3584*4}"); a(f"s_lshl_b32 s{st+3}, s{st+1}, 9"); a(f"s_add_u32 s{st+2}, s{st+2}, s{st+3}")
    a(f"s_add_u32 s{st+2}, s{st+2}, {WS_GU:#x}"); a(f"s_add_u32 s{st+3}, s{st+2}, {3584*4}")
    a("s_mov_b64 exec, 0xffffffff")
    for q in range(2): a(f"buffer_store_dwordx4 {v(D[q],4)}, v{off}, {s(sWS,4)}, s{st+2+q} offen {flags}")
    a("s_mov_b64 exec, -1")
    V.release(mk)

def gather_issue(a, V, sWS, sHEAD, sQB, s_hw, st, vlane, flags=""):
    S = V.alloc(2, 2); C = V.alloc(8); o8 = V.alloc(); o4 = V.alloc()
    a(f"v_lshlrev_b32 v{o8}, 3, v{vlane}"); a(f"v_and_b32 v{o4}, 31, v{vlane}"); a(f"v_lshlrev_b32 v{o4}, 2, v{o4}")
    a(f"s_lshl_b32 s{st}, s{sQB}, 11"); a(f"s_lshl_b32 s{st+1}, s{s_hw}, 9"); a(f"s_add_u32 s{st}, s{st}, s{st+1}")
    a(f"buffer_load_dwordx2 {v(S,2)}, v{o8}, {s(sWS,4)}, s{st} offen {flags}")
    a(f"s_min_u32 s{st+1}, s{s_hw}, 2"); a(f"s_lshl_b32 s{st}, s{st+1}, 12"); a(f"s_lshl_b32 s{st+1}, s{sHEAD}, 7")
    a(f"s_add_u32 s{st}, s{st}, s{st+1}"); a(f"s_add_u32 s{st}, s{st}, {WS_CS:#x}")
    for p in range(8):
        a(f"buffer_load_dword v{C+p}, v{o4}, {s(sWS,4)}, s{st} offen {flags}")
        if p < 7: a(f"s_add_u32 s{st}, s{st}, {3072*4}")
    return S, C, o4

def gather_store(a, V, S, C, o4, s_hw, st, vlane):
    mk = V.mark(); ad = V.alloc()
    a(f"s_lshl_b32 s{st}, s{s_hw}, 8"); a(f"s_add_u32 s{st}, s{st}, {LDS_EP}")
    a(f"v_lshl_add_u32 v{ad}, v{vlane}, 2, s{st}")
    a(f"ds_write_b32 v{ad}, v{S}"); a(f"ds_write_b32 v{ad}, v{S+1} offset:1024")
    for p in range(1, 8): a(f"v_add_f32 v{C}, v{C}, v{C+p}")
    a(f"s_min_u32 s{st}, s{s_hw}, 2"); a(f"s_lshl_b32 s{st}, s{st}, 7"); a(f"s_add_u32 s{st}, s{st}, {LDS_EP+2048}")
    a(f"v_add_u32 v{ad}, s{st}, v{o4}")
    a(f"ds_write_b32 v{ad}, v{C}")
    V.release(mk)

def gemm_a(a, V, name, sX, sW, sWS, sHEAD, sQB, sWV, st, vlane, store_q=True, stflags="", timing=None):
    sAoff, sBoff, sAdst, sBdst, sIT, sT, sT2 = st, st+1, st+2, st+3, st+4, st+5, st+6
    ACC = [V.alloc(16, 4) for _ in range(6)]
    F = [V.alloc(20, 4) for _ in range(2)]
    FX = [[F[f] + 4*i for i in range(2)] for f in range(2)]
    FW = [[F[f] + 8 + 4*g for g in range(3)] for f in range(2)]
    vA = V.alloc(8); vB = V.alloc(3); rA = V.alloc(4); rB = V.alloc(); t = V.alloc(); u = V.alloc()
    a(f"v_lshrrev_b32 v{t}, 4, v{vlane}"); a(f"v_and_b32 v{u}, 7, v{vlane}"); a(f"v_xor_b32 v{u}, v{u}, v{t}")
    a(f"v_lshrrev_b32 v{t}, 3, v{vlane}"); a(f"v_lshlrev_b32 v{t}, 11, v{t}")
    a(f"v_lshl_add_u32 v{vA}, v{u}, 4, v{t}")
    a(f"v_xor_b32 v{vA+1}, 64, v{vA}")
    a(f"v_add_u32 v{vA+1}, {16384-1024}, v{vA+1}")
    for i in range(2, 8): a(f"v_add_u32 v{vA+i}, {(i - i%2)*16384 - ((i&3) - (i&1))*1024}, v{vA + i%2}")
    a(f"v_lshrrev_b32 v{t}, 2, v{vlane}"); a(f"v_mul_u32_u24 v{t}, 6144, v{t}"); a(f"v_and_b32 v{u}, 3, v{vlane}")
    a(f"v_lshl_add_u32 v{vB}, v{u}, 4, v{t}")
    for k in (1, 2): a(f"v_add_u32 v{vB+k}, {1024*k}, v{vB}")
    a(f"s_lshl_b32 s{sAoff}, s{sQB}, 19"); a(f"s_lshl_b32 s{sT}, s{sWV}, 17"); a(f"s_add_u32 s{sAoff}, s{sAoff}, s{sT}")
    a(f"s_mul_i32 s{sBoff}, s{sWV}, {16*6144}"); a(f"s_lshl_b32 s{sT}, s{sHEAD}, 6"); a(f"s_add_u32 s{sBoff}, s{sBoff}, s{sT}")
    a(f"s_mul_i32 s{sAdst}, s{sWV}, 24576"); a(f"s_mul_i32 s{sBdst}, s{sWV}, 3072"); a(f"s_add_u32 s{sBdst}, s{sBdst}, {LDS_B}")
    def dma(buf, k):
        out = []
        if k == 0: out.append(f"s_add_u32 m0, s{sBdst}, {buf*12288}")
        if k == 3: out.append(f"s_add_u32 m0, s{sAdst}, {buf*8192}")
        if k == 7: out.append(f"s_add_u32 m0, s{sAdst}, {buf*8192+4096}")
        if k in (0, 3, 7): out.append("s_nop 0")
        if k < 3: out.append(f"buffer_load_dwordx4 v{vB+k}, {s(sW,4)}, s{sBoff} offen offset:{1024*k} lds")
        else: out.append(f"buffer_load_dwordx4 v{vA+k-3}, {s(sX,4)}, s{sAoff} offen offset:{1024*((k-3)&3)} lds")
        if k == 2: out.append(f"s_add_u32 s{sBoff}, s{sBoff}, {64*6144}")
        if k == 10: out.append(f"s_add_u32 s{sAoff}, s{sAoff}, 128")
        return out
    for buf in range(2):
        for k in range(11):
            for l in dma(buf, k): a(l)
    for k in range(3):
        for l in dma(2, k): a(l)
    a(f"v_and_b32 v{t}, 31, v{vlane}"); a(f"v_bfe_u32 v{u}, v{vlane}, 1, 3"); a(f"v_lshrrev_b32 v{rB}, 5, v{vlane}")
    a(f"v_xor_b32 v{u}, v{u}, v{rB}"); a(f"v_lshlrev_b32 v{u}, 4, v{u}"); a(f"v_lshl_add_u32 v{t}, v{t}, 7, s{sAdst}")
    for k in range(4):
        a(f"v_xor_b32 v{rA+k}, {32*k}, v{u}"); a(f"v_add_u32 v{rA+k}, v{rA+k}, v{t}")
    a(f"v_lshlrev_b32 v{rB}, 9, v{rB}")
    a(f"v_bfe_u32 v{t}, v{vlane}, 2, 2"); a(f"v_lshl_add_u32 v{rB}, v{t}, 6, v{rB}")
    a(f"v_bfe_u32 v{t}, v{vlane}, 4, 1"); a(f"v_lshl_add_u32 v{rB}, v{t}, 5, v{rB}")
    a(f"v_and_b32 v{t}, 3, v{vlane}"); a(f"v_lshl_add_u32 v{rB}, v{t}, 3, v{rB}")
    a(f"v_add_u32 v{rB}, {LDS_B}, v{rB}")
    for i in range(6):
        for r in range(16): a(f"v_mov_b32 v{ACC[i]+r}, 0")
    def reads(buf, st_):
        f = st_ & 1
        X = lambda i: f"ds_read_b128 {v(FX[f][i],4)}, v{rA+st_} offset:{buf*8192+i*4096}"
        Wt = lambda g, k: f"ds_read_b64_tr_b16 {v(FW[f][g]+2*k,2)}, v{rB} offset:{buf*12288+st_*3072+g*1024+k*256}"
        return [X(0), Wt(0, 0), Wt(0, 1), X(1), Wt(1, 0), Wt(1, 1), Wt(2, 0), Wt(2, 1)]
    def mfmas(st_):
        f = st_ & 1
        out = []
        for g in range(3):
            for i in range(2):
                A_, B_ = (FW[f][g], FX[f][i]) if g < 2 else (FX[f][i], FW[f][g])
                out.append(f"{M32} {v(ACC[2*g+i],16)}, {v(A_,4)}, {v(B_,4)}, {v(ACC[2*g+i],16)}")
        return out
    a(f"s_mov_b32 s{sIT}, 0")
    a("s_waitcnt vmcnt(14)"); a("s_barrier")
    if timing: a(f"s_memtime s[{timing}:{timing+1}]")
    for l in reads(0, 0): a(l)
    def step(buf, st_, rd, dm, pre=[]):
        a("s_waitcnt lgkmcnt(0)")
        for l in pre: a(l)
        mf = mfmas(st_)
        slots = [[] for _ in range(6)]
        for j, l in enumerate(rd): slots[min(j // 3, 5)].append(l)
        for j, grp in enumerate(dm): slots[3 + j % 3] += grp
        for j in range(6):
            a(mf[j])
            for l in slots[j]: a(l)
    a(".p2align 6")
    a.label(f"L_gemm_{name}")
    for j in range(3):
        for st_ in range(4):
            if st_ < 3:
                ks = [[3, 4, 5], [6, 7, 8], [9, 10]][st_]
                dm = [dma((j + 2) % 3, k) for k in ks]
                step(j, st_, reads(j, st_ + 1), dm)
            else:
                dm = [dma(j, k) for k in range(3)]
                if j == 1: dm[0] = [f"s_cmp_eq_u32 s{sIT}, 4", f"s_cselect_b32 s{sX+2}, 0, s{sX+2}", f"s_cselect_b32 s{sW+2}, 0, s{sW+2}"] + dm[0]
                if j == 2: dm[2] = dm[2] + [f"s_add_u32 s{sIT}, s{sIT}, 1", f"s_cmp_lt_u32 s{sIT}, 5"]
                step(j, st_, reads((j + 1) % 3, 0), dm, pre=["s_waitcnt vmcnt(11)", "s_barrier"])
    a(f"s_cbranch_scc1 L_gemm_{name}")
    CS = [V.alloc(16, 4) for _ in range(2)]; MV = [V.alloc(16, 4) for _ in range(2)]; RV = [V.alloc(16, 4), F[0]]
    mq = [V.alloc(2, 2) for _ in range(2)]; rq = [V.alloc(2, 2) for _ in range(2)]; rk = [V.alloc(2, 2) for _ in range(2)]; cv = V.alloc(2, 2)
    e0 = t; e1 = u; e2 = vB
    pre15 = [f"v_lshrrev_b32 v{e0}, 5, v{vlane}", f"v_lshlrev_b32 v{e0}, 4, v{e0}", f"s_lshl_b32 s{sT}, s{sWV}, 8", f"s_add_u32 s{sT}, s{sT}, {LDS_EP}",
             f"v_add_u32 v{e2}, {LDS_EP}, v{e0}", f"v_add_u32 v{e0}, s{sT}, v{e0}",
             f"v_and_b32 v{e1}, 31, v{vlane}", f"v_lshlrev_b32 v{e1}, 2, v{e1}", f"v_add_u32 v{vB+1}, {LDS_EP}, v{e1}", f"v_add_u32 v{e1}, s{sT}, v{e1}"]
    ep = []
    for g in range(2): ep += [f"ds_read_b128 {v(CS[g]+4*r,4)}, v{e2} offset:{2048+g*128+r*32}" for r in range(4)]
    for i in range(2): ep += [f"ds_read_b32 v{mq[i]}, v{e1} offset:{i*128}", f"ds_read_b32 v{rk[i]}, v{e1} offset:{1024+i*128}"]
    ep += [f"ds_read_b32 v{cv}, v{vB+1} offset:{2048+256}"]
    for i in range(2):
        ep += [f"ds_read_b128 {v(MV[i]+4*r,4)}, v{e0} offset:{i*128+r*32}" for r in range(4)]
        ep += [f"ds_read_b128 {v(RV[i]+4*r,4)}, v{e0} offset:{1024+i*128+r*32}" for r in range(4)]
    step(0, 0, reads(0, 1), [pre15[:4], pre15[4:7], pre15[7:]])
    step(0, 1, reads(0, 2), [ep[0:2], ep[2:4], ep[4:6]])
    step(0, 2, reads(0, 3), [ep[6:8], ep[8:11], ep[11:13]])
    step(0, 3, ep[13:], [])
    if timing: a(f"s_memtime s[{timing+2}:{timing+3}]")
    a(f"s_lshl_b32 s{sT}, s{sHEAD}, 6"); a(f"s_lshl_b32 s{sT2}, s{sQB}, 3"); a(f"s_add_u32 s{sT}, s{sT}, s{sT2}")
    a(f"s_lshl_b32 s{sT2}, s{sWV}, 1"); a(f"s_add_u32 s{sT}, s{sT}, s{sT2}")
    a(f"s_lshl_b32 s{sAoff}, s{sT}, 12"); a(f"s_add_u32 s{sAoff}, s{sAoff}, {WS_KV:#x}"); a(f"s_add_u32 s{sBoff}, s{sAoff}, 4096")
    a(f"s_lshl_b32 s{sT}, s{sT}, 11"); a(f"s_add_u32 s{sT}, s{sT}, {WS_Q:#x}")
    a(f"v_lshlrev_b32 v{vA}, 4, v{vlane}")
    a("s_waitcnt lgkmcnt(0)")
    for i in range(2): a(f"v_mul_f32 v{rq[i]}, {QSCALE:#x}, v{rk[i]}")
    order = [2, 3, 4, 5, 0, 1]
    for x in order:
        g, i = x // 2, x % 2
        for r in range(0, 16, 2):
            d = v(ACC[x] + r, 2)
            if g < 2: a(f"v_pk_fma_f32 {d}, {v(CS[g]+r,2)}, {v(mq[i],2)}, {d} op_sel_hi:[1,0,1] neg_lo:[0,1,0] neg_hi:[0,1,0]")
            else: a(f"v_pk_fma_f32 {d}, {v(MV[i]+r,2)}, {v(cv,2)}, {d} op_sel_hi:[1,0,1] neg_lo:[0,1,0] neg_hi:[0,1,0]")
        for r in range(0, 16, 2):
            d = v(ACC[x] + r, 2)
            if g < 2: a(f"v_pk_mul_f32 {d}, {d}, {v((rq if g == 0 else rk)[i],2)} op_sel_hi:[1,0]")
            else: a(f"v_pk_mul_f32 {d}, {d}, {v(RV[i]+r,2)}")
        for k in range(8): a(f"v_cvt_pk_bf16_f32 v{ACC[x]+k}, v{ACC[x]+2*k}, v{ACC[x]+2*k+1}")
        if g == 0 and not store_q: continue
        for c in range(2):
            so, off = (sT, i*2048 + c*1024) if g == 0 else ((sAoff, sBoff)[i], (g-1)*2048 + c*1024)
            a(f"buffer_store_dwordx4 {v(ACC[x]+4*c,4)}, v{vA}, {s(sWS,4)}, s{so} offen offset:{off} {stflags}")
    return ACC

def k_a(name="a_kernel", timing=False):
    a = Asm()
    kernel_begin(a, name)
    a("s_cmp_ge_u32 s2, 256"); a(f"s_cbranch_scc1 L_end_{name}")
    a("s_load_dwordx4 s[4:7], s[0:1], 0")
    a(f"s_load_dwordx4 s[8:11], s[0:1], {KA['wg']}")
    a(f"s_load_dwordx2 s[12:13], s[0:1], {KA['ws']}")
    if timing: a("s_memtime s[60:61]")
    sX, sW, sG, sU, sWS = 16, 20, 24, 28, 32
    sHEAD, sQB, sT, sWV, sMASK, sKEY, sJOB, st = 36, 37, 38, 39, 40, 41, 42, 44
    wg_map(a, sHEAD, sQB, sT)
    V = Regs("v", 1, 256)
    vlane = V.alloc(); t = V.alloc()
    a(f"v_lshrrev_b32 v{t}, 6, v0"); a(f"v_and_b32 v{vlane}, 63, v0"); a(f"v_readfirstlane_b32 s{sWV}, v{t}")
    a("s_waitcnt lgkmcnt(0)")
    srd(a, sX, 4, 2048*2048); srd(a, sW, 6, 1024*6144); srd(a, sG, 8, 1024*7168); srd(a, sU, 10, 1024*7168); srd(a, sWS, 12, WS_SIZE)
    a(f"s_cmp_ge_u32 s{sWV}, 4"); a(f"s_cbranch_scc1 L_help_{name}")
    mk = V.mark()
    gemm_a(a, V, name, sX, sW, sWS, sHEAD, sQB, sWV, st, vlane, timing=62 if timing else None)
    if timing:
        a("s_waitcnt vmcnt(0)"); a("s_memtime s[66:67]"); a("s_waitcnt lgkmcnt(0)")
        a(f"s_lshl_b32 s{sT}, s2, 3"); a(f"s_add_u32 s{sT}, s{sT}, s{sWV}"); a(f"s_lshl_b32 s{sT}, s{sT}, 4"); a(f"s_add_u32 s{sT}, s{sT}, {WS_TIME:#x}")
        a("v_mov_b32 v4, s60"); a("v_mov_b32 v5, s62"); a("v_mov_b32 v6, s64"); a("v_mov_b32 v7, s66"); a("v_mov_b32 v1, 0")
        a(f"buffer_store_dwordx4 v[4:7], v1, {s(sWS,4)}, s{sT} offen")
    a("s_endpgm")
    V.release(mk)
    a.label(f"L_help_{name}")
    sHW = sWV
    a(f"s_sub_u32 s{sHW}, s{sWV}, 4")
    a(f"s_mov_b32 s{sMASK}, 0xffff0000")
    vl16 = V.alloc(); a(f"v_lshlrev_b32 v{vl16}, 4, v{vlane}")
    S, C, o4 = gather_issue(a, V, sWS, sHEAD, sQB, sHW, st, vlane)
    MK = selj_masks(a, V, vlane)
    a("s_barrier")
    argmax(a, V, sWS, vl16, sKEY)
    gather_store(a, V, S, C, o4, sHW, st, vlane)
    a("s_waitcnt lgkmcnt(0)")
    a(f"s_cmp_ge_u32 s2, 224"); a(f"s_cbranch_scc1 L_nomoe_{name}")
    a(f"s_lshl_b32 s{sJOB}, s2, 2"); a(f"s_add_u32 s{sJOB}, s{sJOB}, s{sHW}")
    W = m1_issue(a, V, sG, sU, sJOB, st, vlane)
    X, S2 = m1_xload(a, V, sX, sWS, sKEY, st, vlane)
    for _ in range(5): a("s_barrier")
    a("s_waitcnt vmcnt(0)")
    m1_compute(a, V, W, X, S2, MK, sWS, st, sMASK, vlane)
    for _ in range(10): a("s_barrier")
    a("s_endpgm")
    a.label(f"L_nomoe_{name}")
    for _ in range(15): a("s_barrier")
    a.label(f"L_end_{name}")
    a("s_endpgm")
    return a.text(), kernel_desc(name, V.hi), (256, 512, LDS_A_TOTAL)
if __name__ == "__main__":
    b, d, l = k_a(); print(finish("", b, [d]))
```

```python
from pieces import *

def m2_issue(a, V, sWD, sWS, s_job, s_hw, st, vlane, flags=""):
    W = V.alloc(32, 4); G = V.alloc(16); off = V.alloc(); t = V.alloc(); o2 = V.alloc()
    a(f"v_lshrrev_b32 v{off}, 4, v{vlane}"); a(f"v_lshlrev_b32 v{off}, 13, v{off}")
    a(f"v_and_b32 v{t}, 15, v{vlane}"); a(f"v_lshl_add_u32 v{off}, v{t}, 4, v{off}")
    a(f"s_lshl_b32 s{st}, s{s_job}, 15"); a(f"s_lshl_b32 s{st+1}, s{s_hw}, 9"); a(f"s_add_u32 s{st}, s{st}, s{st+1}")
    for i in range(4):
        for c in range(2): a(f"buffer_load_dwordx4 {v(W+8*i+4*c,4)}, v{off}, {s(sWD,4)}, s{st} offen offset:{(i%2)*2048+c*256} nt")
        if i == 1: a(f"s_add_u32 s{st}, s{st}, 4096")
    return W, G, o2, t

def m2_partials(a, G, o2, t, sWS, s_job, st, vlane, flags=""):
    a(f"v_lshrrev_b32 v{o2}, 4, v{vlane}"); a(f"v_mul_u32_u24 v{o2}, {2*3584*4}, v{o2}")
    a(f"v_and_b32 v{t}, 15, v{vlane}"); a(f"v_lshl_add_u32 v{o2}, v{t}, 2, v{o2}")
    a(f"s_lshl_b32 s{st}, s{s_job}, 6"); a(f"s_add_u32 s{st}, s{st}, {WS_GU:#x}"); a(f"s_add_u32 s{st+1}, s{st}, {3584*4}")
    for k in range(8):
        for q in range(2):
            a(f"buffer_load_dword v{G+8*q+k}, v{o2}, {s(sWS,4)}, s{st+q} offen {flags}")
            if k < 7: a(f"s_add_u32 s{st+q}, s{st+q}, {8*3584*4}")

def m2_compute(a, V, W, G, MK, sWS, s_job, s_hw, st, smask, vlane, flags=""):
    mk = V.mark()
    A = [V.alloc(4, 4) for _ in range(2)]; D = [V.alloc(4, 4) for _ in range(2)]; H = V.alloc(4); t = V.alloc(); u = V.alloc(); off = V.alloc()
    g, up = G, G + 8
    for k in range(1, 8):
        a(f"v_add_f32 v{g}, v{g}, v{g+k}"); a(f"v_add_f32 v{up}, v{up}, v{up+k}")
    for sw in ("v_permlane32_swap_b32", "v_permlane16_swap_b32"):
        a(f"v_mov_b32 v{t}, v{g}"); a(f"v_mov_b32 v{u}, v{up}"); a("s_nop 0")
        a(f"{sw} v{t}, v{g}"); a(f"{sw} v{u}, v{up}")
        a(f"v_add_f32 v{g}, v{g}, v{t}"); a(f"v_add_f32 v{up}, v{up}, v{u}")
    rne_pair(a, g, up, g, up, t, smask)
    a(f"v_mul_f32 v{t}, {f2u(-math.log2(math.e)):#x}, v{g}")
    a(f"v_exp_f32 v{t}, v{t}"); a("s_nop 0"); a(f"v_add_f32 v{t}, 1.0, v{t}"); a(f"v_rcp_f32 v{t}, v{t}"); a("s_nop 0")
    a(f"v_mul_f32 v{g}, v{g}, v{t}")
    a(f"v_cvt_pk_bf16_f32 v{t}, v{g}, v{g}"); a(f"v_and_b32 v{g}, s{smask}, v{t}")
    a(f"v_mul_f32 v{g}, v{g}, v{up}")
    a(f"v_cvt_pk_bf16_f32 v{g}, v{g}, v{g}")
    a(f"v_and_b32 v{off}, 48, v{vlane}")
    for i in range(4): a(f"ds_bpermute_b32 v{H+i}, v{off}, v{g} offset:{4*i}")
    a(f"v_and_b32 v{off}, 15, v{vlane}"); a(f"v_lshlrev_b32 v{off}, 5, v{off}")
    a(f"v_and_b32 v{t}, 16, v{vlane}"); a(f"v_add_u32 v{off}, v{off}, v{t}")
    a(f"s_lshl_b32 s{st}, s{s_job}, 12"); a(f"s_lshl_b32 s{st+1}, s{s_hw}, 10"); a(f"s_add_u32 s{st}, s{st}, s{st+1}"); a(f"s_add_u32 s{st}, s{st}, {WS_Y:#x}")
    a("s_waitcnt lgkmcnt(0)")
    for i in range(4):
        for k in range(4): a(f"v_and_b32 v{A[i%2]+k}, v{H+i}, v{MK+k}")
        a("s_nop 1")
        for c in range(2): a(f"{M16} {v(D[c],4)}, {v(A[i%2],4)}, {v(W+8*i+4*c,4)}, {'0' if i == 0 else v(D[c],4)}")
    a("s_nop 6")
    a("s_mov_b64 exec, 0xffffffff")
    for c in range(2): a(f"buffer_store_dwordx4 {v(D[c],4)}, v{off}, {s(sWS,4)}, s{st} offen offset:{c*512} {flags}")
    a("s_mov_b64 exec, -1")
    V.release(mk)

class Attn:
    def __init__(self, V, NBUF=4):
        self.NBUF = NBUF
        self.Q = [[V.alloc(4, 4) for c in range(2)] for i in range(2)]
        self.O = [V.alloc(16, 4) for i in range(2)]
        self.L = [V.alloc(4, 4) for i in range(2)]
        self.S = [V.alloc(16, 4) for i in range(2)]
        self.P = V.alloc(8, 4)
        self.KV = [V.alloc(16, 4) for i in range(NBUF)]
        self.SEL = V.alloc(4, 4)
        self.t = V.alloc(); self.u = V.alloc()
    def consts(self, a, vlane):
        t, u = self.t, self.u
        a(f"v_lshrrev_b32 v{t}, 4, v{vlane}"); a(f"v_lshrrev_b32 v{u}, 2, v{vlane}"); a(f"v_xor_b32 v{t}, v{t}, v{u}"); a(f"v_and_b32 v{t}, 1, v{t}")
        a(f"v_cmp_eq_u32 vcc, 0, v{t}"); a(f"v_mov_b32 v{u}, 0x3f803f80"); a("s_nop 0")
        for k in range(4): a(f"v_cndmask_b32 v{self.SEL+k}, 0, v{u}, vcc")
    def zero(self, a):
        for i in range(2):
            for r in range(16): a(f"v_mov_b32 v{self.O[i]+r}, 0")
            for r in range(4): a(f"v_mov_b32 v{self.L[i]+r}, 0")
        for r in range(4):
            a(f"v_mov_b32 v{self.P+4+r}, 0"); a(f"v_mov_b32 v{self.KV[self.NBUF-1]+12+r}, 0")
    def ldkv(self, buf, k, vl16, sWS, sKV, fl):
        return f"buffer_load_dwordx4 {v(self.KV[buf]+4*k,4)}, v{vl16}, {s(sWS,4)}, s{sKV} offen offset:{1024*k} {fl}"
    def first_loads(self, a, vl16, sWS, sKV, fl):
        for b in range(self.NBUF - 1):
            for k in range(4): a(self.ldkv(b, k, vl16, sWS, sKV, fl))
            a(f"s_add_u32 s{sKV}, s{sKV}, 4096")
    def loop(self, a, label, vl16, sWS, sKV, sCNT, fl):
        NBUF, Q, O, L, S, P, KV, SEL = self.NBUF, self.Q, self.O, self.L, self.S, self.P, self.KV, self.SEL
        a(f"s_waitcnt vmcnt({4*(NBUF-2)})")
        a(f"{M32} {v(S[0],16)}, {v(KV[0],4)}, {v(Q[0][0],4)}, 0")
        a(f"{M32} {v(S[0],16)}, {v(KV[0]+4,4)}, {v(Q[0][1],4)}, {v(S[0],16)}")
        a("s_nop 7"); a("s_nop 3")
        a(".p2align 6")
        a.label(label)
        for t in range(NBUF):
            for i in range(2):
                c, n = i, 1 - i
                nt, ni = (t, 1) if i == 0 else (t + 1, 0)
                pt, pi = (t, 0) if i == 1 else (t - 1, 1)
                kb, vb, pb = KV[nt % NBUF], KV[t % NBUF], KV[pt % NBUF]
                E = lambda r: a(f"v_exp_f32 v{S[c]+r}, v{S[c]+r}")
                C = lambda k: a(f"v_cvt_pk_bf16_f32 v{P+k}, v{S[c]+2*k}, v{S[c]+2*k+1}")
                def ld(k):
                    if i == 0:
                        a(self.ldkv(pt % NBUF, k, vl16, sWS, sKV, fl))
                        if k == 3: a(f"s_add_u32 s{sKV}, s{sKV}, 4096")
                if ni == 0: a(f"s_waitcnt vmcnt({4*(NBUF-2)})")
                a(f"{M32} {v(S[n],16)}, {v(kb,4)}, {v(Q[ni][0],4)}, 0")
                E(0); E(1); E(2)
                a(f"{M32} {v(S[n],16)}, {v(kb+4,4)}, {v(Q[ni][1],4)}, {v(S[n],16)}")
                E(3); E(4); E(5); C(0)
                a(f"{M32} {v(O[pi],16)}, {v(pb+12,4)}, {v(P+4,4)}, {v(O[pi],16)}")
                ld(0)
                E(6); E(7); C(1); C(2)
                a(f"{M16} {v(L[pi],4)}, {v(SEL,4)}, {v(P+4,4)}, {v(L[pi],4)}")
                ld(1)
                C(3); E(8); E(9)
                a(f"{M32} {v(O[i],16)}, {v(vb+8,4)}, {v(P,4)}, {v(O[i],16)}")
                ld(2)
                E(10); E(11); E(12); C(4)
                a(f"{M16} {v(L[i],4)}, {v(SEL,4)}, {v(P,4)}, {v(L[i],4)}")
                ld(3)
                if t == NBUF - 1 and i == 1:
                    a(f"s_sub_u32 s{sCNT}, s{sCNT}, 1"); a(f"s_cmp_lg_u32 s{sCNT}, 0")
                E(13); E(14); E(15); C(5); C(6); C(7)
        a(f"s_cbranch_scc1 {label}")
        a("s_nop 1")
        a(f"{M32} {v(O[1],16)}, {v(KV[NBUF-1]+12,4)}, {v(P+4,4)}, {v(O[1],16)}")
        a(f"{M16} {v(L[1],4)}, {v(SEL,4)}, {v(P+4,4)}, {v(L[1],4)}")
    def put_partial(self, a, vad):
        for i in range(2):
            if i == 1: a("s_nop 7")
            for k in range(4): a(f"ds_write_b128 v{vad}, {v(self.O[i]+4*k,4)} offset:{(i*5+k)*1024}")
            a(f"ds_write_b32 v{vad}, v{self.L[i]} offset:{(i*5+4)*1024}")
    def finish(self, a, vad, vl16, sWS, sO, fl=""):
        S = self.S
        for i in range(2):
            for k in range(4): a(f"ds_read_b128 {v(S[i]+4*k,4)}, v{vad} offset:{(i*5+k)*1024}")
            a(f"ds_read_b32 v{self.P+i}, v{vad} offset:{(i*5+4)*1024}")
        for i in range(2):
            a(f"s_waitcnt lgkmcnt({5*(1-i)})")
            a(f"v_add_f32 v{self.L[i]}, v{self.L[i]}, v{self.P+i}")
            a(f"v_rcp_f32 v{self.L[i]}, v{self.L[i]}")
            for r in range(0, 16, 2): a(f"v_pk_add_f32 {v(self.O[i]+r,2)}, {v(self.O[i]+r,2)}, {v(S[i]+r,2)}")
            for r in range(0, 16, 2): a(f"v_pk_mul_f32 {v(self.O[i]+r,2)}, {v(self.O[i]+r,2)}, {v(self.L[i],2)} op_sel_hi:[1,0]")
            for k in range(8): a(f"v_cvt_pk_bf16_f32 v{self.O[i]+k}, v{self.O[i]+2*k}, v{self.O[i]+2*k+1}")
            for c in range(2): a(f"buffer_store_dwordx4 {v(self.O[i]+4*c,4)}, v{vl16}, {s(sWS,4)}, s{sO} offen offset:{c*1024} {fl}")
            if i == 0: a(f"s_add_u32 s{sO}, s{sO}, 65536")

def k_b(name="b_kernel", timing=False, NA=32, moe=True, fl="", prioB=False):
    a = Asm(); V = Regs("v", 1, 256)
    kernel_begin(a, name)
    a("s_cmp_ge_u32 s2, 256"); a(f"s_cbranch_scc1 L_end_{name}")
    a(f"s_load_dwordx2 s[4:5], s[0:1], {KA['ws']}")
    a(f"s_load_dwordx2 s[6:7], s[0:1], {KA['wd']}")
    if timing: a("s_memtime s[60:61]")
    sWS, sWD = 8, 12
    sHEAD, sQB, sT, sWV, sKV, sCNT, sQ, sO, sG, sMASK, st = 16, 17, 18, 19, 20, 21, 22, 23, 24, 25, 28
    wg_map(a, sHEAD, sQB, sT)
    vlane = V.alloc(); vl16 = V.alloc(); vad = V.alloc()
    a(f"v_lshrrev_b32 v{vad}, 6, v0"); a(f"v_and_b32 v{vlane}, 63, v0"); a(f"v_readfirstlane_b32 s{sWV}, v{vad}")
    a(f"v_lshlrev_b32 v{vl16}, 4, v{vlane}")
    a(f"s_and_b32 s{sG}, s{sWV}, 3")
    a(f"s_lshl_b32 s{sT}, s{sG}, 1"); a(f"s_lshl_b32 s{sQ}, s{sQB}, 3"); a(f"s_add_u32 s{sT}, s{sT}, s{sQ}")
    a(f"s_lshl_b32 s{sO}, s{sT}, 16"); a(f"s_lshl_b32 s{sQ}, s{sHEAD}, 11"); a(f"s_add_u32 s{sO}, s{sO}, s{sQ}"); a(f"s_add_u32 s{sO}, s{sO}, {WS_O:#x}")
    a(f"s_lshl_b32 s{sQ}, s{sHEAD}, 6"); a(f"s_add_u32 s{sQ}, s{sQ}, s{sT}"); a(f"s_lshl_b32 s{sQ}, s{sQ}, 11"); a(f"s_add_u32 s{sQ}, s{sQ}, {WS_Q:#x}")
    a(f"s_lshl_b32 s{sKV}, s{sHEAD}, 18"); a(f"s_add_u32 s{sKV}, s{sKV}, {WS_KV:#x}")
    a(f"s_mul_i32 s{sT}, s{sG}, 10240"); a(f"v_add_u32 v{vad}, s{sT}, v{vl16}")
    a(f"s_mov_b32 s{sCNT}, {NA//4}")
    a("s_waitcnt lgkmcnt(0)")
    srd(a, sWS, 4, WS_SIZE); srd(a, sWD, 6, 3584*2048)
    a(f"s_cmp_lt_u32 s{sWV}, 4"); a(f"s_cbranch_scc1 L_att_{name}")
    a(f"s_add_u32 s{sKV}, s{sKV}, {NA*4096}"); a(f"s_mov_b32 s{sCNT}, {(64-NA)//4}")
    if prioB: a("s_setprio 1")
    if moe:
        a(f"s_cmp_ge_u32 s2, 224"); a(f"s_cbranch_scc1 L_att_{name}")
        mk = V.mark()
        a(f"s_mov_b32 s{sMASK}, 0xffff0000")
        W, G, o2, t = m2_issue(a, V, sWD, sWS, 2, sG, st, vlane)
        m2_partials(a, G, o2, t, sWS, 2, st, vlane)
        MK = selj_masks(a, V, vlane)
        a("s_waitcnt vmcnt(0)")
        m2_compute(a, V, W, G, MK, sWS, 2, sG, st, sMASK, vlane)
        V.release(mk)
    a.label(f"L_att_{name}")
    T = Attn(V)
    for i in range(2):
        for c in range(2): a(f"buffer_load_dwordx4 {v(T.Q[i][c],4)}, v{vl16}, {s(sWS,4)}, s{sQ} offen offset:{i*2048+c*1024} {fl}")
    T.first_loads(a, vl16, sWS, sKV, fl)
    T.consts(a, vlane); T.zero(a)
    if timing: a("s_memtime s[62:63]")
    T.loop(a, f"L_loop_{name}", vl16, sWS, sKV, sCNT, fl)
    if timing: a("s_memtime s[64:65]")
    a(f"s_cmp_lt_u32 s{sWV}, 4"); a(f"s_cbranch_scc0 L_fin_{name}")
    T.put_partial(a, vad)
    a("s_waitcnt lgkmcnt(0)"); a("s_barrier")
    a(f"s_branch L_done_{name}")
    a.label(f"L_fin_{name}")
    a("s_barrier")
    T.finish(a, vad, vl16, sWS, sO)
    a.label(f"L_done_{name}")
    if timing:
        a("s_waitcnt vmcnt(0)"); a("s_memtime s[66:67]"); a("s_waitcnt lgkmcnt(0)")
        a(f"s_lshl_b32 s{sT}, s2, 3"); a(f"s_add_u32 s{sT}, s{sT}, s{sWV}"); a(f"s_lshl_b32 s{sT}, s{sT}, 4"); a(f"s_add_u32 s{sT}, s{sT}, {WS_TIME:#x}")
        a("v_mov_b32 v4, s60"); a("v_mov_b32 v5, s62"); a("v_mov_b32 v6, s64"); a("v_mov_b32 v7, s66"); a("v_mov_b32 v1, 0")
        a(f"buffer_store_dwordx4 v[4:7], v1, {s(sWS,4)}, s{sT} offen")
    a.label(f"L_end_{name}")
    a("s_endpgm")
    return a.text(), kernel_desc(name, V.hi), (256, 512, 40960)
if __name__ == "__main__":
    b, d, l = k_b(); print(finish("", b, [d]))
```

```python
from pieces import *
LDS_X = 131072

def c_map(a, sRB, sCB, sT):
    a(f"s_lshr_b32 s{sT}, s2, 3")
    a(f"s_and_b32 s{sCB}, s{sT}, 7"); a(f"s_lshr_b32 s{sRB}, s{sT}, 3")
    a(f"s_and_b32 s{sT}, s2, 1"); a(f"s_lshl_b32 s{sT}, s{sT}, 3"); a(f"s_add_u32 s{sCB}, s{sCB}, s{sT}")
    a(f"s_and_b32 s{sT}, s2, 6"); a(f"s_lshl_b32 s{sT}, s{sT}, 1"); a(f"s_add_u32 s{sRB}, s{sRB}, s{sT}")

def wo_dma(a, V, sWO, sCB, s_first, nchunks, stride, st, vlane):
    mk = V.mark()
    off = V.alloc(4); t = V.alloc(); u = V.alloc()
    a(f"v_bfe_u32 v{t}, v{vlane}, 4, 1"); a(f"v_lshlrev_b32 v{t}, 1, v{t}")
    a(f"v_and_b32 v{u}, 7, v{vlane}"); a(f"v_xor_b32 v{u}, v{u}, v{t}")
    a(f"v_lshrrev_b32 v{t}, 3, v{vlane}"); a(f"v_lshlrev_b32 v{t}, 11, v{t}")
    a(f"v_lshl_add_u32 v{off}, v{u}, 4, v{t}")
    for i in range(1, 4): a(f"v_add_u32 v{off+i}, {i*15360}, v{off}")
    a(f"s_lshl_b32 s{st}, s{s_first}, 16"); a(f"s_lshl_b32 s{st+1}, s{sCB}, 7"); a(f"s_add_u32 s{st}, s{st}, s{st+1}")
    a(f"s_lshl_b32 s{st+1}, s{s_first}, 12")
    for q in range(nchunks):
        a(f"s_add_u32 m0, s{st+1}, {q*stride*4096}"); a("s_nop 0")
        for i in range(4): a(f"buffer_load_dwordx4 v{off+i}, {s(sWO,4)}, s{st} offen offset:{i*1024} lds")
        if q < nchunks - 1: a(f"s_add_u32 s{st}, s{st}, {stride*65536}")
    V.release(mk)

class Proj:
    def __init__(self, V):
        self.A = V.alloc(128, 4)
        self.ACC = [V.alloc(16, 4) for _ in range(2)]
        self.F = [[V.alloc(4, 4) for _ in range(2)] for _ in range(2)]
        self.rd = V.alloc(2); self.X = V.alloc(8, 4); self.S = V.alloc(2, 2); self.xoff = V.alloc(); self.t = V.alloc(); self.u = V.alloc()
    def addr(self, a, sKH, sRT, sCB, st, vlane):
        t, u, rd = self.t, self.u, self.rd
        a(f"v_lshrrev_b32 v{rd}, 5, v{vlane}"); a(f"v_lshlrev_b32 v{rd}, 9, v{rd}")
        a(f"v_bfe_u32 v{t}, v{vlane}, 2, 2"); a(f"v_lshl_add_u32 v{rd}, v{t}, 7, v{rd}")
        a(f"v_and_b32 v{t}, 1, v{vlane}"); a(f"v_lshl_add_u32 v{rd}, v{t}, 6, v{rd}")
        a(f"v_bfe_u32 v{t}, v{vlane}, 4, 1"); a(f"v_lshl_add_u32 v{rd}, v{t}, 4, v{rd}")
        a(f"v_bfe_u32 v{t}, v{vlane}, 1, 1"); a(f"v_lshl_add_u32 v{rd}, v{t}, 3, v{rd}")
        a(f"v_bfe_u32 v{t}, v{vlane}, 3, 1"); a(f"v_xor_b32 v{t}, s{sKH}, v{t}"); a(f"v_lshl_add_u32 v{rd}, v{t}, 5, v{rd}")
        a(f"s_lshl_b32 s{st}, s{sKH}, 16"); a(f"v_add_u32 v{rd}, s{st}, v{rd}")
        a(f"v_xor_b32 v{rd+1}, 32, v{rd}")
        a(f"v_and_b32 v{t}, 31, v{vlane}"); a(f"v_lshlrev_b32 v{t}, 11, v{t}"); a(f"v_and_b32 v{u}, 32, v{vlane}")
        a(f"v_lshl_add_u32 v{self.xoff}, v{u}, 1, v{t}")
        a(f"s_lshl_b32 s{st}, s{sRT}, 16"); a(f"s_lshl_b32 s{st+1}, s{sCB}, 7"); a(f"s_add_u32 s{st}, s{st}, s{st+1}")
        a(f"s_lshl_b32 s{st+1}, s{sKH}, 5"); a(f"s_add_u32 s{st}, s{st}, s{st+1}")
    def x_issue(self, a, sX, sWS, sXO, sRT, st, vlane, fl=""):
        for k in range(2): a(f"buffer_load_dwordx4 {v(self.X+4*k,4)}, v{self.xoff}, {s(sX,4)}, s{sXO} offen offset:{16*k}")
        a(f"v_and_b32 v{self.t}, 31, v{vlane}"); a(f"v_lshlrev_b32 v{self.t}, 3, v{self.t}"); a(f"s_lshl_b32 s{st}, s{sRT}, 8")
        a(f"buffer_load_dwordx2 {v(self.S,2)}, v{self.t}, {s(sWS,4)}, s{st} offen {fl}")
    def init_acc(self, a, smask):
        A0, A1 = self.ACC
        unpack(a, A1, self.X, 8, smask)
        for r in range(16): a(f"v_mov_b32 v{A0+r}, v{A1+r}")
        normalize(a, A0, 16, f"v{self.S}", f"v{self.S+1}", self.t, smask)
        for r in range(16): a(f"v_add_f32 v{A0+r}, v{A0+r}, v{A1+r}")
        for r in range(16): a(f"v_mov_b32 v{A1+r}, 0")
    def a_issue(self, a, sWS, sAO, vl16, fl=""):
        for j in range(32):
            a(f"buffer_load_dwordx4 {v(self.A+4*j,4)}, v{vl16}, {s(sWS,4)}, s{sAO} offen offset:{(j%4)*1024} {fl}")
            if j % 4 == 3 and j < 31: a(f"s_add_u32 s{sAO}, s{sAO}, 4096")
    def reads(self, j):
        return [f"ds_read_b64_tr_b16 {v(self.F[j%2][x]+2*k,2)}, v{self.rd+x} offset:{j*2048+k*1024}" for x in range(2) for k in range(2)]
    def main(self, a, after=0):
        for l in self.reads(0): a(l)
        for j in range(32):
            a(f"s_waitcnt vmcnt({31-j+after}) lgkmcnt(0)")
            nx = self.reads(j + 1) if j < 31 else []
            for x in range(2):
                a(f"{M32} {v(self.ACC[x],16)}, {v(self.F[j%2][x],4)}, {v(self.A+4*j,4)}, {v(self.ACC[x],16)}")
                for l in nx[2*x:2*x+2]: a(l)
    def finish(self, a, sOUT, sXO, sWV, st, vl16):
        ad, ad2 = self.t, self.u
        a(f"s_lshl_b32 s{st}, s{sWV}, 12"); a(f"s_add_u32 s{st}, s{st}, {LDS_X}"); a(f"v_add_u32 v{ad}, s{st}, v{vl16}")
        a(f"v_xor_b32 v{ad2}, 16384, v{ad}")
        a("s_nop 7")
        for k in range(4): a(f"ds_write_b128 v{ad}, {v(self.ACC[1]+4*k,4)} offset:{k*1024}")
        a("s_waitcnt lgkmcnt(0)"); a("s_barrier")
        for k in range(4): a(f"ds_read_b128 {v(self.A+4*k,4)}, v{ad2} offset:{k*1024}")
        A0 = self.ACC[0]
        for k in range(4):
            a(f"s_waitcnt lgkmcnt({3-k})")
            for r in (0, 2): a(f"v_pk_add_f32 {v(A0+4*k+r,2)}, {v(A0+4*k+r,2)}, {v(self.A+4*k+r,2)}")
            for r in (0, 1): a(f"v_cvt_pk_bf16_f32 v{A0+2*k+r}, v{A0+4*k+2*r}, v{A0+4*k+2*r+1}")
            if k % 2 == 1: a(f"buffer_store_dwordx4 {v(A0+2*(k-1),4)}, v{self.xoff}, {s(sOUT,4)}, s{sXO} offen offset:{8*(k-1)}")

def rsel_upd(a, V, P, sKEY, sRT, sKH, ybase, st, smask, vlane, label):
    mk = V.mark()
    Y = V.alloc(16, 4); t = V.alloc(); u = V.alloc()
    a(f"s_and_b32 s{st}, s{sKEY}, 0xffff"); a(f"s_sub_u32 s{st}, 2047, s{st}")
    a(f"s_lshr_b32 s{st+1}, s{st}, 5"); a(f"s_cmp_lg_u32 s{st+1}, s{sRT}"); a(f"s_cbranch_scc1 {label}")
    a(f"v_and_b32 v{t}, 32, v{vlane}"); a(f"v_lshlrev_b32 v{t}, 2, v{t}"); a(f"s_lshl_b32 s{st+1}, s{sKH}, 6"); a(f"s_add_u32 s{st+1}, s{st+1}, {ybase}")
    a(f"v_add_u32 v{t}, s{st+1}, v{t}")
    for k in range(4): a(f"ds_read_b128 {v(Y+4*k,4)}, v{t} offset:{16*k}")
    a(f"s_lshr_b32 s{st+1}, s{sKEY}, 16"); a(f"s_bitcmp1_b32 s{st+1}, 15"); a(f"s_cselect_b32 s{st+2}, 0, 0x7fff")
    a(f"s_xor_b32 s{st+1}, s{st+1}, s{st+2}"); a(f"s_xor_b32 s{st+1}, s{st+1}, 0x8000"); a(f"s_lshl_b32 s{st+1}, s{st+1}, 16")
    a(f"v_mov_b32 v{u}, s{st+1}"); a(f"v_mul_f32 v{u}, {f2u(-math.log2(math.e)):#x}, v{u}"); a(f"v_exp_f32 v{u}, v{u}"); a("s_nop 0")
    a(f"v_add_f32 v{u}, 1.0, v{u}"); a(f"v_rcp_f32 v{u}, v{u}"); a("s_nop 0")
    a(f"v_cvt_pk_bf16_f32 v{u}, v{u}, v{u}"); a(f"v_and_b32 v{u}, s{smask}, v{u}")
    a(f"s_and_b32 s{st}, s{st}, 31"); a(f"v_and_b32 v{t}, 31, v{vlane}"); a(f"v_cmp_eq_u32 vcc, s{st}, v{t}")
    a("s_waitcnt lgkmcnt(0)")
    for r in range(0, 16, 2): rne_pair(a, Y+r, Y+r+1, Y+r, Y+r+1, t, smask)
    for r in range(16): a(f"v_mul_f32 v{Y+r}, v{u}, v{Y+r}")
    for r in range(0, 16, 2): rne_pair(a, Y+r, Y+r+1, Y+r, Y+r+1, t, smask)
    for r in range(16): a(f"v_cndmask_b32 v{Y+r}, 0, v{Y+r}, vcc")
    for r in range(16): a(f"v_add_f32 v{P.ACC[0]+r}, v{P.ACC[0]+r}, v{Y+r}")
    a.label(label)
    V.release(mk)

def k_c(name="c_kernel", timing=False):
    a = Asm(); V = Regs("v", 1, 256)
    kernel_begin(a, name)
    a("s_cmp_ge_u32 s2, 256"); a(f"s_cbranch_scc1 L_end_{name}")
    a(f"s_load_dwordx2 s[4:5], s[0:1], {KA['x']}"); a(f"s_load_dwordx2 s[6:7], s[0:1], {KA['wo']}")
    a(f"s_load_dwordx2 s[8:9], s[0:1], {KA['out']}"); a(f"s_load_dwordx2 s[10:11], s[0:1], {KA['ws']}")
    if timing: a("s_memtime s[60:61]")
    sX, sWO, sOUT, sWS = 12, 16, 20, 24
    sRB, sCB, sT, sWV, sKH, sRT, sXO, sAO, sMASK, sKEY, st = 28, 29, 30, 31, 32, 33, 34, 35, 36, 37, 40
    c_map(a, sRB, sCB, sT)
    vlane = V.alloc(); vl16 = V.alloc()
    a(f"v_lshrrev_b32 v{vl16}, 6, v0"); a(f"v_and_b32 v{vlane}, 63, v0"); a(f"v_readfirstlane_b32 s{sWV}, v{vl16}")
    a(f"v_lshlrev_b32 v{vl16}, 4, v{vlane}")
    a(f"s_mov_b32 s{sMASK}, 0xffff0000")
    a(f"s_lshr_b32 s{sKH}, s{sWV}, 2"); a(f"s_and_b32 s{sRT}, s{sWV}, 3"); a(f"s_lshl_b32 s{sT}, s{sRB}, 2"); a(f"s_add_u32 s{sRT}, s{sRT}, s{sT}")
    a(f"s_lshl_b32 s{sAO}, s{sRT}, 16"); a(f"s_lshl_b32 s{sT}, s{sKH}, 15"); a(f"s_add_u32 s{sAO}, s{sAO}, s{sT}"); a(f"s_add_u32 s{sAO}, s{sAO}, {WS_O:#x}")
    P = Proj(V)
    YB = LDS_X
    a(f"v_mov_b32 v{P.t}, 0"); a(f"v_lshlrev_b32 v{P.u}, 2, v{vlane}"); a(f"v_add_u32 v{P.u}, {YB}, v{P.u}"); a(f"ds_write_b32 v{P.u}, v{P.t}")
    a("s_waitcnt lgkmcnt(0)")
    srd(a, sX, 4, 2048*2048); srd(a, sWO, 6, 1024*2048); srd(a, sOUT, 8, 2048*2048); srd(a, sWS, 10, WS_SIZE)
    P.addr(a, sKH, sRT, sCB, st, vlane); a(f"s_mov_b32 s{sXO}, s{st}")
    wo_dma(a, V, sWO, sCB, sWV, 4, 8, st, vlane)
    P.x_issue(a, sX, sWS, sXO, sRT, st, vlane)
    a("s_barrier")
    argmax(a, V, sWS, vl16, sKEY)
    P.a_issue(a, sWS, sAO, vl16)
    a(f"s_and_b32 s{st}, s{sKEY}, 0xffff"); a(f"s_sub_u32 s{st}, 2047, s{st}"); a(f"s_lshr_b32 s{st}, s{st}, 7")
    a(f"s_cmp_lg_u32 s{st}, s{sRB}"); a(f"s_cbranch_scc1 L_noy_{name}")
    mk = V.mark()
    Y = V.alloc(28, 4); o = V.alloc(); t = V.alloc()
    a(f"v_lshrrev_b32 v{o}, 4, v{vlane}"); a(f"v_lshlrev_b32 v{o}, 12, v{o}"); a(f"v_and_b32 v{t}, 15, v{vlane}"); a(f"v_lshl_add_u32 v{o}, v{t}, 4, v{o}")
    a(f"s_mul_i32 s{st}, s{sWV}, {28*4096}"); a(f"s_lshl_b32 s{st+1}, s{sCB}, 8"); a(f"s_add_u32 s{st}, s{st}, s{st+1}"); a(f"s_add_u32 s{st}, s{st}, {WS_Y:#x}")
    for k in range(7):
        a(f"buffer_load_dwordx4 {v(Y+4*k,4)}, v{o}, {s(sWS,4)}, s{st} offen")
        if k < 6: a(f"s_add_u32 s{st}, s{st}, 16384")
    a(f"v_lshlrev_b32 v{t}, 4, v{t}"); a(f"v_add_u32 v{t}, {YB}, v{t}")
    a("s_waitcnt vmcnt(0)")
    for k in range(1, 7):
        for r in range(4): a(f"v_add_f32 v{Y+r}, v{Y+r}, v{Y+4*k+r}")
    for r in range(4): a(f"ds_add_f32 v{t}, v{Y+r} offset:{4*r}")
    V.release(mk)
    a.label(f"L_noy_{name}")
    P.init_acc(a, sMASK)
    a("s_waitcnt lgkmcnt(0)"); a("s_barrier")
    rsel_upd(a, V, P, sKEY, sRT, sKH, YB, st, sMASK, vlane, f"L_noupd_{name}")
    a("s_barrier")
    if timing: a("s_memtime s[62:63]")
    P.main(a)
    if timing: a("s_memtime s[64:65]")
    P.finish(a, sOUT, sXO, sWV, st, vl16)
    if timing:
        a("s_waitcnt vmcnt(0)"); a("s_memtime s[66:67]"); a("s_waitcnt lgkmcnt(0)")
        a(f"s_lshl_b32 s{sT}, s2, 3"); a(f"s_add_u32 s{sT}, s{sT}, s{sWV}"); a(f"s_lshl_b32 s{sT}, s{sT}, 4"); a(f"s_add_u32 s{sT}, s{sT}, {WS_TIME:#x}")
        a("v_mov_b32 v4, s60"); a("v_mov_b32 v5, s62"); a("v_mov_b32 v6, s64"); a("v_mov_b32 v7, s66"); a("v_mov_b32 v1, 0")
        a(f"buffer_store_dwordx4 v[4:7], v1, {s(sWS,4)}, s{sT} offen")
    a.label(f"L_end_{name}")
    a("s_endpgm")
    return a.text(), kernel_desc(name, V.hi), (256, 512, 163840)
if __name__ == "__main__":
    b, d, l = k_c(); print(finish("", b, [d]))
```

```python
from pieces import *

def colsum_issue(a, V, sW, s_head, s_ks, s_seg, st, vlane):
    B = V.alloc(32, 4); off = V.alloc(); t = V.alloc()
    a(f"v_lshrrev_b32 v{off}, 2, v{vlane}")
    a(f"v_mul_u32_u24 v{off}, 6144, v{off}")
    a(f"v_and_b32 v{t}, 3, v{vlane}")
    a(f"v_lshl_add_u32 v{off}, v{t}, 4, v{off}")
    a(f"s_mul_i32 s{st}, s{s_ks}, {128*6144}")
    a(f"s_lshl_b32 s{st+1}, s{s_seg}, 11")
    a(f"s_add_u32 s{st}, s{st}, s{st+1}")
    a(f"s_lshl_b32 s{st+1}, s{s_head}, 6")
    a(f"s_add_u32 s{st}, s{st}, s{st+1}")
    for i in range(8):
        a(f"buffer_load_dwordx4 {v(B+4*i,4)}, v{off}, {s(sW,4)}, s{st} offen")
        if i < 7: a(f"s_add_u32 s{st}, s{st}, {16*6144}")
    return B

def colsum_compute(a, V, B, MK, sWS, s_head, s_ks, s_seg, st, vlane, flags=""):
    mk = V.mark()
    A = V.alloc(4, 4); D = V.alloc(4, 4); off = V.alloc(); t = V.alloc()
    for k in range(4): a(f"v_and_b32 v{A+k}, 0x3f803f80, v{MK+k}")
    a("s_nop 1")
    for i in range(8): a(f"{M16} {v(D,4)}, {v(A,4)}, {v(B+4*i,4)}, {'0' if i == 0 else v(D,4)}")
    a(f"v_and_b32 v{off}, 3, v{vlane}")
    a(f"v_lshlrev_b32 v{off}, 5, v{off}")
    a(f"v_and_b32 v{t}, 16, v{vlane}")
    a(f"v_add_u32 v{off}, v{off}, v{t}")
    a(f"s_mul_i32 s{st}, s{s_ks}, {3072*4}")
    a(f"s_lshl_b32 s{st+1}, s{s_seg}, 12")
    a(f"s_add_u32 s{st}, s{st}, s{st+1}")
    a(f"s_lshl_b32 s{st+1}, s{s_head}, 7")
    a(f"s_add_u32 s{st}, s{st}, s{st+1}")
    a(f"s_add_u32 s{st}, s{st}, {WS_CS:#x}")
    for st_ in ("row_ror:4", "row_ror:8"):
        for k in range(4): a(f"v_add_f32_dpp v{D+k}, v{D+k}, v{D+k} {st_} row_mask:0xf bank_mask:0xf")
    a("s_mov_b64 exec, 0x000f000f")
    a(f"buffer_store_dwordx4 {v(D,4)}, v{off}, {s(sWS,4)}, s{st} offen {flags}")
    a("s_mov_b64 exec, -1")
    V.release(mk)

def stats_store(a, V, sWS, s_row, st, flags=""):
    mk = V.mark()
    D = V.alloc(4, 4); K = V.alloc(2, 2); z = V.alloc()
    for k in range(4): a(f"v_mov_b32 v{D+k}, s{st+k}")
    for k in range(2): a(f"v_mov_b32 v{K+k}, s{st+4+k}")
    a(f"v_mov_b32 v{z}, 0")
    a(f"s_lshl_b32 s{st+6}, s{s_row}, 3")
    a(f"s_lshl_b32 s{st+7}, s{s_row}, 2")
    a(f"s_add_u32 s{st+7}, s{st+7}, {WS_R:#x}")
    a("s_mov_b64 exec, 1")
    a(f"buffer_store_dwordx4 {v(D,4)}, v{z}, {s(sWS,4)}, s{st+6} offen {flags}")
    a(f"buffer_store_dwordx2 {v(K,2)}, v{z}, {s(sWS,4)}, s{st+7} offen {flags}")
    a("s_mov_b64 exec, -1")
    V.release(mk)

def k_s(name="s_kernel"):
    a = Asm(); V = Regs("v", 1, 128)
    kernel_begin(a, name)
    a("s_cmp_ge_u32 s2, 256"); a(f"s_cbranch_scc1 L_end_{name}")
    a("s_load_dwordx4 s[4:7], s[0:1], 0")
    a(f"s_load_dwordx2 s[8:9], s[0:1], {KA['wr']}")
    a(f"s_load_dwordx2 s[10:11], s[0:1], {KA['ws']}")
    sX, sW, sWR, sWS = 12, 16, 20, 24
    sHEAD, sQB, sT, sWV, sROW, sOFF, sMASK, st = 28, 29, 30, 31, 32, 33, 34, 36
    wg_map(a, sHEAD, sQB, sT)
    vlane = V.alloc(); t = V.alloc()
    a(f"v_lshrrev_b32 v{t}, 6, v0"); a(f"v_and_b32 v{vlane}, 63, v0"); a(f"v_readfirstlane_b32 s{sWV}, v{t}")
    a(f"s_mov_b32 s{sMASK}, 0xffff0000")
    a(f"s_lshl_b32 s{sROW}, s2, 3"); a(f"s_lshl_b32 s{sT}, s{sWV}, 1"); a(f"s_add_u32 s{sROW}, s{sROW}, s{sT}")
    a(f"s_lshl_b32 s{sOFF}, s{sROW}, 11")
    R = stats_loads(a, V, sX, sWR, sROW, vlane)
    a("s_waitcnt lgkmcnt(0)")
    srd(a, sX, 4, 2048*2048); srd(a, sW, 6, 1024*6144); srd(a, sWR, 8, 2048); srd(a, sWS, 10, WS_SIZE)
    stats_issue(a, R, sX, sWR, sOFF)
    a(f"s_min_u32 s{sT}, s{sWV}, 2")
    B = colsum_issue(a, V, sW, sHEAD, sQB, sT, st, vlane)
    MK = selj_masks(a, V, vlane)
    a("s_waitcnt vmcnt(8)")
    stats_compute(a, V, R, sROW, st, sMASK)
    stats_store(a, V, sWS, sROW, st)
    a("s_waitcnt vmcnt(2)")
    colsum_compute(a, V, B, MK, sWS, sHEAD, sQB, sT, st, vlane)
    a.label(f"L_end_{name}")
    a("s_endpgm")
    return a.text(), kernel_desc(name, V.hi), (256, 256, 0)
if __name__ == "__main__":
    b, d, l = k_s(); print(finish("", b, [d]))
```

```python
from common import *
M32 = "v_mfma_f32_32x32x16_bf16"; M16 = "v_mfma_f32_16x16x32_bf16"
QSCALE = 0x3e82940d
import struct, math
def f2u(x): return struct.unpack("<I", struct.pack("<f", x))[0]
QSCALE = f2u(32 ** -0.5 * math.log2(math.e))

def wave_reduce(a, regs, op="v_add_f32", zero_ok=True):
    steps = ["row_shr:1", "row_shr:2", "row_shr:4", "row_shr:8", "row_bcast:15 row_mask:0xa", "row_bcast:31 row_mask:0xc"]
    for st in steps:
        pad = max(0, 2 - (len(regs) - 1))
        if pad: a(f"s_nop {pad-1}")
        for r in regs:
            m = st if "row_mask" in st else st + " row_mask:0xf"
            a(f"{op}_dpp v{r}, v{r}, v{r} {m} bank_mask:0xf")

def rne_pair(a, d0, d1, s0, s1, tmp, smask):
    a(f"v_cvt_pk_bf16_f32 v{tmp}, v{s0}, v{s1}")
    a(f"v_lshlrev_b32 v{d0}, 16, v{tmp}")
    a(f"v_and_b32 v{d1}, s{smask}, v{tmp}")

def unpack(a, dst, src, n, smask):
    for i in range(n):
        a(f"v_and_b32 v{dst+2*i+1}, s{smask}, v{src+i}")
        a(f"v_lshlrev_b32 v{dst+2*i}, 16, v{src+i}")

def normalize(a, xs, n, m_op, ri_op, tmp, smask):
    for i in range(n): a(f"v_subrev_f32 v{xs+i}, {m_op}, v{xs+i}")
    for i in range(0, n, 2): rne_pair(a, xs+i, xs+i+1, xs+i, xs+i+1, tmp, smask)
    for i in range(n): a(f"v_mul_f32 v{xs+i}, {ri_op}, v{xs+i}")
    for i in range(0, n, 2): rne_pair(a, xs+i, xs+i+1, xs+i, xs+i+1, tmp, smask)

def stats_loads(a, V, sX, sWR, s_row, vlane):
    R = dict(x=[V.alloc(8, 4) for _ in range(2)], w=V.alloc(8, 4), off=V.alloc())
    a(f"v_lshlrev_b32 v{R['off']}, 4, v{vlane}")
    return R

def stats_issue(a, R, sX, sWR, s_rowoff):
    for r in range(2):
        for k in range(2):
            a(f"buffer_load_dwordx4 {v(R['x'][r]+4*k,4)}, v{R['off']}, {s(sX,4)}, s{s_rowoff} offen offset:{r*2048+k*1024}")
    for k in range(2):
        a(f"buffer_load_dwordx4 {v(R['w']+4*k,4)}, v{R['off']}, {s(sWR,4)}, 0 offen offset:{k*1024}")

def stats_compute(a, V, R, s_row, st, smask):
    mk = V.mark()
    X = [V.alloc(16) for _ in range(2)]; W = V.alloc(16); acc = [V.alloc() for _ in range(2)]; t = [V.alloc() for _ in range(4)]
    for r in range(2): unpack(a, X[r], R['x'][r], 8, smask)
    unpack(a, W, R['w'], 8, smask)
    for r in range(2): a(f"v_add_f32 v{acc[r]}, v{X[r]}, v{X[r]+1}")
    for i in range(2, 16):
        for r in range(2): a(f"v_add_f32 v{acc[r]}, v{acc[r]}, v{X[r]+i}")
    wave_reduce(a, acc)
    a("s_nop 0")
    for r in range(2): a(f"v_readlane_b32 s{st+r}, v{acc[r]}, 63")
    a("s_nop 0")
    for r in range(2): a(f"v_mul_f32 v{t[r]}, s{st+r}, v{R['off']}" if False else f"v_mov_b32 v{t[r]}, s{st+r}")
    for r in range(2): a(f"v_mul_f32 v{t[r]}, 0x3a800000, v{t[r]}")
    for r in range(2): a(f"v_mov_b32 v{acc[r]}, 0")
    for i in range(16):
        for r in range(2): a(f"v_sub_f32 v{t[2+r]}, v{X[r]+i}, v{t[r]}")
        for r in range(2): a(f"v_fmac_f32 v{acc[r]}, v{t[2+r]}, v{t[2+r]}")
    wave_reduce(a, acc)
    a("s_nop 0")
    for r in range(2): a(f"v_readlane_b32 s{st+2+r}, v{acc[r]}, 63")
    a("s_nop 0")
    for r in range(2): a(f"v_mov_b32 v{acc[r]}, s{st+2+r}")
    for r in range(2): a(f"v_mul_f32 v{acc[r]}, 0x3a800000, v{acc[r]}")
    rne_pair(a, t[0], t[1], t[0], t[1], t[2], smask)
    rne_pair(a, acc[0], acc[1], acc[0], acc[1], t[2], smask)
    for r in range(2): a(f"v_add_f32 v{acc[r]}, {f2u(1e-5):#x}, v{acc[r]}")
    rne_pair(a, acc[0], acc[1], acc[0], acc[1], t[2], smask)
    for r in range(2): a(f"v_sqrt_f32 v{acc[r]}, v{acc[r]}")
    a("s_nop 0")
    rne_pair(a, acc[0], acc[1], acc[0], acc[1], t[2], smask)
    for r in range(2): a(f"v_rcp_f32 v{acc[r]}, v{acc[r]}")
    a("s_nop 0")
    for r in range(2):
        a(f"v_readfirstlane_b32 s{st+2*r}, v{t[r]}")
        a(f"v_readfirstlane_b32 s{st+2*r+1}, v{acc[r]}")
    a("s_nop 1")
    for r in range(2): normalize(a, X[r], 16, f"s{st+2*r}", f"s{st+2*r+1}", t[2], smask)
    for r in range(2): a(f"v_mul_f32 v{acc[r]}, v{X[r]}, v{W}")
    for i in range(1, 16):
        for r in range(2): a(f"v_fmac_f32 v{acc[r]}, v{X[r]+i}, v{W+i}")
    wave_reduce(a, acc)
    a(f"v_cvt_pk_bf16_f32 v{t[0]}, v{acc[0]}, v{acc[1]}")
    a("s_nop 0")
    a(f"v_readlane_b32 s{st+4}, v{t[0]}, 63")
    a("s_nop 0")
    a(f"s_lshr_b32 s{st+5}, s{st+4}, 16")
    a(f"s_and_b32 s{st+4}, s{st+4}, 0xffff")
    for r in range(2):
        k = st + 4 + r
        a(f"s_bitcmp1_b32 s{k}, 15")
        a(f"s_cselect_b32 s{st+6}, 0x7fff, 0")
        a(f"s_xor_b32 s{k}, s{k}, s{st+6}")
        a(f"s_xor_b32 s{k}, s{k}, 0x8000")
        a(f"s_lshl_b32 s{k}, s{k}, 16")
        a(f"s_sub_u32 s{st+6}, {2047-r}, s{s_row}")
        a(f"s_or_b32 s{k}, s{k}, s{st+6}")
    V.release(mk)

def selj_masks(a, V, vlane):
    MK = V.alloc(4); t = V.alloc(); u = V.alloc()
    a(f"v_and_b32 v{t}, 1, v{vlane}")
    a(f"v_lshlrev_b32 v{t}, 4, v{t}")
    a(f"v_mov_b32 v{u}, 0xffff")
    a(f"v_lshlrev_b32 v{u}, v{t}, v{u}")
    a(f"v_bfe_u32 v{t}, v{vlane}, 1, 3")
    for k in range(4):
        a(f"v_cmp_eq_u32 vcc, {k}, v{t}")
        a("s_nop 1")
        a(f"v_cndmask_b32 v{MK+k}, 0, v{u}, vcc")
    return MK

def argmax(a, V, sWS, vl16, s_key, flags=""):
    mk = V.mark()
    K = V.alloc(32, 4)
    a(f"s_mov_b32 s{s_key}, {WS_R:#x}")
    for i in range(8):
        a(f"buffer_load_dwordx4 {v(K+4*i,4)}, v{vl16}, {s(sWS,4)}, s{s_key} offen offset:{(i%4)*1024} {flags}")
        if i == 3: a(f"s_add_u32 s{s_key}, s{s_key}, 4096")
    a("s_waitcnt vmcnt(0)")
    a(f"v_max_u32 v{K}, v{K}, v{K+1}")
    for i in range(2, 32, 2): a(f"v_max3_u32 v{K}, v{K}, v{K+i}, v{K+i+1}")
    wave_reduce(a, [K], op="v_max_u32")
    a("s_nop 0")
    a(f"v_readlane_b32 s{s_key}, v{K}, 63")
    a("s_nop 0")
    V.release(mk)
```

```python
import sys
from common import *
import k_s, k_a, k_b, k_c
HDR = open("parallel_sum__mha_block__moe_arch_mod__prompt.s.ref").read().split("; Override launch")[0]
def build(timing=None, **kw):
    ks = [("s", k_s.k_s()), ("a", k_a.k_a(timing=timing == "a")), ("b", k_b.k_b(timing=timing == "b", **kw)), ("c", k_c.k_c(timing=timing == "c"))]
    hdr = HDR + "".join(f"; @launch kernel={n}_kernel grid=({g},1,1) block=({b},1,1) lds={l}\n" for n, (_, _, (g, b, l)) in ks)
    return finish(hdr, "".join(k[1][0] for k in ks), [k[1][1] for k in ks])
if __name__ == "__main__":
    open(sys.argv[1], "w").write(build())
```
